```python
import torch

def _softmax(x, axis=-1):
    return torch.softmax(x, dim=axis)

def _gelu(x):
    return torch.nn.functional.gelu(x, approximate='tanh')

def _silu(x):
    return torch.nn.functional.silu(x)

def _sigmoid(x):
    return torch.sigmoid(x)

def _layernorm(x, axis=-1, eps=1e-05):
    m = x.mean(dim=axis, keepdim=True)
    v = x.var(dim=axis, keepdim=True, unbiased=False)
    return (x - m) / torch.sqrt(v + eps)

def _scatter_add(tgt, idx, src, axis=0):
    return tgt.clone().index_add_(axis, idx, src)

def _segment_sum(src, seg, n):
    out = torch.zeros((n,) + src.shape[1:], dtype=src.dtype)
    return out.index_add_(0, seg, src)

def _pad(x, pw):
    flat = tuple((v for pair in reversed(pw) for v in pair))
    return torch.nn.functional.pad(x, flat)
kernel_name = 'adaLN_cond__sliding_block_cached__glu_gated_reglu__prompt'

def setup_inputs():

    _w = lambda a: (lambda t: t.to(torch.bfloat16) if t.is_floating_point() else t)(torch.as_tensor(a))

    def _A_setup():
        B, Sq, D = (1, 2048, 576)
        Hq, Hkv, Sk, Dh = (32, 16, 2048, 128)
        assert Hq % Hkv == 0, (Hq, Hkv)
        return {'x': _w((lambda *s: torch.randn(*s, dtype=torch.bfloat16) * 0.05)(B, Sq, D)), 'k_cache': _w((lambda *s: torch.randn(*s, dtype=torch.bfloat16) * 1.6)(B, Hkv, Sk, Dh)), 'v_cache': _w((lambda *s: torch.randn(*s, dtype=torch.bfloat16) * 0.8)(B, Hkv, Sk, Dh)), 'wq': _w((lambda *s: torch.randn(*s, dtype=torch.bfloat16) * 1.6)(D, Hq * Dh) * D ** (-0.5)), 'wo': _w((lambda *s: torch.randn(*s, dtype=torch.bfloat16) * 0.8)(Hq * Dh, D) * (Hq * Dh) ** (-0.5))}
    _A_in = _A_setup()

    def _B_setup():
        B, S, D, F = (1, 2048, 576, 4608)
        return {'x': _w((lambda *s: torch.randn(*s, dtype=torch.bfloat16) * 0.05)(B, S, D)), 'W_gate': _w((lambda *s: torch.randn(*s, dtype=torch.bfloat16) * 0.4)(D, F) * (2.0 / D) ** 0.5), 'W_up': _w((lambda *s: torch.randn(*s, dtype=torch.bfloat16) * 0.4)(D, F) * (2.0 / D) ** 0.5), 'W_down': _w((lambda *s: torch.randn(*s, dtype=torch.bfloat16) * 0.4)(F, D) * (1.0 / F) ** 0.5)}
    _B_in = _B_setup()
    return {'A_x': _A_in['x'], 'A_k_cache': _A_in['k_cache'], 'A_v_cache': _A_in['v_cache'], 'A_wq': _A_in['wq'], 'A_wo': _A_in['wo'], 'B_x': _B_in['x'], 'B_W_gate': _B_in['W_gate'], 'B_W_up': _B_in['W_up'], 'B_W_down': _B_in['W_down'], 'c': _w((lambda *s: torch.randn(*s, dtype=torch.bfloat16) * 0.2)(1, 576) * 8.0), 'w_mod': _w((lambda *s: torch.randn(*s, dtype=torch.bfloat16) * 0.2)(576, 6 * 576) * 576 ** (-0.5) * 8.0)}

def reference(A_x, A_k_cache, A_v_cache, A_wq, A_wo, B_x, B_W_gate, B_W_up, B_W_down, c, w_mod):

    def _A_ref(x, k_cache, v_cache, wq, wo):
        B, Sq, D = x.shape
        Hq, Dh = (32, 128)
        Hkv, Sk = (k_cache.shape[1], k_cache.shape[2])
        W = min(4096, max(256, Sk // 4))
        rep = Hq // Hkv
        q = (lambda x, *d: x.permute(*d))((x @ wq).reshape(B, Sq, Hq, Dh), 0, 2, 1, 3)
        k = (lambda x, n, axis: torch.repeat_interleave(x, n, dim=axis))(k_cache[:, :, Sk - W:, :], rep, axis=1)
        v = (lambda x, n, axis: torch.repeat_interleave(x, n, dim=axis))(v_cache[:, :, Sk - W:, :], rep, axis=1)
        scores = torch.einsum('bhqd,bhkd->bhqk', q, k) * Dh ** (-0.5)
        p = _softmax(scores, axis=-1)
        o = torch.einsum('bhqk,bhkd->bhqd', p, v)
        return (lambda x, *d: x.permute(*d))(o, 0, 2, 1, 3).reshape(B, Sq, Hq * Dh) @ wo

    def _B_ref(x, W_gate, W_up, W_down):
        gate = torch.einsum('bsd,df->bsf', x, W_gate)
        up = torch.einsum('bsd,df->bsf', x, W_up)
        gate = gate * (lambda x, dt: x.to(dt))(gate > 0, gate.dtype)
        h = gate * up
        return torch.einsum('bsf,fd->bsd', h, W_down)
    x = A_x
    mod = (_silu(c) @ w_mod).reshape(c.shape[0], 6, 1, -1)
    sa, ca, ga, sb, cb, gb = (mod[:, 0].clone(), mod[:, 1].clone(), mod[:, 2].clone(), mod[:, 3].clone(), mod[:, 4].clone(), mod[:, 5].clone())
    h = _layernorm(x, axis=-1) * (1 + ca) + sa
    x = x + ga * _A_ref(h, A_k_cache, A_v_cache, A_wq, A_wo)
    h = _layernorm(x, axis=-1) * (1 + cb) + sb
    x = x + gb * _B_ref(h, B_W_gate, B_W_up, B_W_down)
    return x
```

```python
import re

def regs(cls, base, n=1):
    return [f"{cls}{base+i}" for i in range(n)]

def rtxt(cls, base, n=1):
    return f"{cls}{base}" if n == 1 else f"{cls}[{base}:{base+n-1}]"

class R:
    def __hash__(self): return hash((self.cls, self.base, self.n))
    def __eq__(self, o): return isinstance(o, R) and (self.cls, self.base, self.n) == (o.cls, o.base, o.n)
    def __init__(self, cls, base, n=1):
        self.cls, self.base, self.n = cls, base, n
    def __str__(self): return rtxt(self.cls, self.base, self.n)
    def l(self): return regs(self.cls, self.base, self.n)
    def __getitem__(self, i):
        if isinstance(i, slice):
            st = i.start or 0
            en = i.stop if i.stop is not None else self.n
            return R(self.cls, self.base + st, en - st)
        assert 0 <= i < self.n
        return R(self.cls, self.base + i, 1)
def V(b, n=1): return R('v', b, n)
def A(b, n=1): return R('a', b, n)
def S(b, n=1): return R('s', b, n)

def _l(x):
    out = []
    for e in x:
        if isinstance(e, R): out += e.l()
        elif isinstance(e, str): out.append(e)
    return out

TRANS = ('v_exp_f32', 'v_log_f32', 'v_rcp_f32', 'v_rsq_f32', 'v_sqrt_f32')

class Ins:
    __slots__ = ('text', 'kind', 'wr', 'rd', 'tag', 'srcc', 'cost', 'wtag', 'rtag', 'extra', 'ab', 'aw', 'pre')
    def __init__(self, text, kind, wr=(), rd=(), tag=None, srcc=(), cost=1, wtag=None, rtag=None, extra=None, ab=()):
        self.text, self.kind = text, kind
        self.wr, self.rd = _l(wr), _l(rd)
        self.tag = tag; self.srcc = _l(srcc); self.cost = cost
        self.wtag = wtag; self.rtag = rtag; self.extra = extra; self.ab = _l(ab); self.aw = []; self.pre = 0

def _op(x):
    return str(x)

def valu(op, dst, *src, mod="", wr_extra=(), rd_extra=(), wtag=None, rtag=None):
    kind = 'trans' if op in TRANS or op.replace('_e64', '') in TRANS else 'valu'
    rd = [s for s in src if isinstance(s, R)] + [s for s in src if s in ('vcc', 'm0', 'exec')] + list(rd_extra)
    txt = []
    for s in src:
        if isinstance(s, tuple):
            txt.append(s[0]); rd.append(s[1])
        else:
            txt.append(_op(s))
    wr = [dst] + list(wr_extra)
    if op.startswith('v_fmac') or op.startswith('v_permlane'):
        rd.append(dst)
    k2 = kind
    if op.startswith('v_permlane'):
        wr.append(src[0]); k2 = 'perm'
    if 'dpp' in op or 'row_' in mod or 'quad_perm' in mod: k2 = 'dpp'
    if op.startswith('v_readfirstlane') or op.startswith('v_readlane'): k2 = 'rdlane'
    t = f"{op} {_op(dst)}, " + ", ".join(txt) + (" " + mod if mod else "")
    return Ins(t, k2, wr, rd, cost=8 if kind == 'trans' else 4, wtag=wtag, rtag=rtag)

def salu(op, dst, *src):
    rd = [s for s in src if isinstance(s, R)] + [s for s in src if s in ('vcc', 'm0', 'exec', 'scc')]
    wr = [dst, 'scc'] if dst is not None else ['scc']
    if op.startswith('s_cselect') or op.startswith('s_addc') or op.startswith('s_subb'): rd.append('scc')
    if op.startswith('s_mov') or op.startswith('s_cselect') or op.startswith('s_mul_i32'):
        wr = [dst]
    ops = ([_op(dst)] if dst is not None else []) + [_op(s) for s in src]
    return Ins(f"{op} " + ", ".join(ops), 'salu', wr, rd, cost=4)

def mfma(d, a, b, c, wtag=None, rtag=None):
    rd = [a, b] + ([c] if isinstance(c, R) else [])
    return Ins(f"v_mfma_f32_16x16x32_bf16 {d}, {a}, {b}, {c}", 'mfma', [d], rd,
               srcc=[c] if isinstance(c, R) else [], cost=2, wtag=wtag, rtag=rtag, ab=[a, b])

def dsread(op, dst, addr, off=0, wtag=None):
    return Ins(f"{op} {dst}, {addr}" + (f" offset:{off}" if off else ""), 'ds', [dst], [addr], wtag=wtag, cost=5)

def dswrite(op, addr, data, off=0):
    return Ins(f"{op} {addr}, {data}" + (f" offset:{off}" if off else ""), 'dsw', [], [addr, data], cost=8)

def bload(op, dst, voff, srd, soff, off=0, flags="", tag=None, wtag=None):
    so = [soff] if isinstance(soff, R) else []
    return Ins(f"{op} {dst}, {voff}, {srd}, {soff} offen" + (f" offset:{off}" if off else "") + (" " + flags if flags else ""),
               'vmem', [dst], [voff, srd] + so, tag=tag, wtag=wtag, cost=4)

def dma(voff, srd, soff, off=0, tag=None, flags=""):
    so = [soff] if isinstance(soff, R) else []
    return Ins(f"buffer_load_dwordx4 {voff}, {srd}, {soff} offen" + (f" offset:{off}" if off else "") + (" " + flags if flags else "") + " lds",
               'dma', [], [voff, srd, 'm0'] + so, tag=tag, cost=4)

def bstore(op, data, voff, srd, soff, off=0, flags="", tag=None, rtag=None):
    so = [soff] if isinstance(soff, R) else []
    return Ins(f"{op} {data}, {voff}, {srd}, {soff} offen" + (f" offset:{off}" if off else "") + (" " + flags if flags else ""),
               'store', [], [data, voff, srd] + so, tag=tag, extra=data, rtag=rtag, cost=4)

def raw(text, kind='other', wr=(), rd=(), cost=4):
    return Ins(text, kind, wr, rd, cost=cost)

def waitvm(tag):
    return Ins("", 'waitvm', tag=tag, cost=4)
def waitall(vm=True, lgkm=True):
    return Ins("", 'waitall', extra=(vm, lgkm), cost=0)
def barrier():
    return Ins("s_barrier", 'barrier', cost=4)
def label(name):
    return Ins(f"{name}:", 'label', cost=0)
def comment(t):
    return Ins(f"; {t}", 'label', cost=0)

VALU_KINDS = ('valu', 'trans', 'perm', 'dpp', 'rdlane')

class Prog:
    def __init__(self):
        self.ins = []
    def add(self, *xs):
        for x in xs:
            if isinstance(x, (list, tuple)): self.add(*x)
            else: self.ins.append(x)

    def finalize(self, check_tags=True):
        out = []
        pl, pv = [], []
        tags = {}
        stats = dict(nop=0, wait=0)
        def emit(i): out.append(i)
        def states_since(pred, limit):
            n = 0
            for j in range(len(out) - 1, -1, -1):
                o = out[j]
                if o.kind == 'label':
                    continue
                if pred(o): return n
                if o.kind == 'nop': n += o.extra
                else: n += 1
                if n >= limit: return None
            return None
        for I in self.ins:
            if I.kind == 'label':
                emit(I); continue
            need_l = need_v = None
            if I.kind == 'waitvm':
                idx = [k for k, (r, t) in enumerate(pv) if t == I.tag]
                if idx: need_v = len(pv) - 1 - idx[-1]
            elif I.kind == 'waitall':
                if I.extra[0] and pv: need_v = 0
                if I.extra[1] and pl: need_l = 0
            else:
                touched = set(I.rd) | set(I.wr) | set(I.aw)
                for k in range(len(pl) - 1, -1, -1):
                    if pl[k][0] & touched:
                        need_l = len(pl) - 1 - k; break
                for k in range(len(pv) - 1, -1, -1):
                    if pv[k][0] & touched:
                        need_v = len(pv) - 1 - k; break
            if need_l is not None or need_v is not None:
                parts = []
                if need_v is not None:
                    n = min(need_v, 63); parts.append(f"vmcnt({n})"); pv = pv[len(pv) - n:] if n else []
                if need_l is not None:
                    n = min(need_l, 15); parts.append(f"lgkmcnt({n})"); pl = pl[len(pl) - n:] if n else []
                emit(Ins("s_waitcnt " + " ".join(parts), 'wait')); stats['wait'] += 1
            if I.kind in ('waitvm', 'waitall'): continue
            if check_tags and I.rtag:
                for r, t in I.rtag.items():
                    for x in r.l():
                        assert tags.get(x) == t, f"tag mismatch at '{I.text}': {x} has {tags.get(x)} expected {t}"
            need = 0
            rd, wr = set(I.rd), set(I.wr)
            def req(pred, n):
                nonlocal need
                s = states_since(pred, n)
                if s is not None and s < n: need = max(need, n - s)
            isv = I.kind in VALU_KINDS
            if I.kind == 'mfma':
                req(lambda o: o.kind in VALU_KINDS and set(o.wr) & rd, 2)
                ab = set(I.ab)
                req(lambda o: o.kind == 'mfma' and set(o.wr) & ab, 8)
                c = set(I.srcc)
                req(lambda o: o.kind == 'mfma' and (set(o.wr) & c) and set(o.wr) != c, 6)
                req(lambda o: o.kind == 'mfma' and (set(o.wr) & wr) and set(o.wr) != c, 6)
            if isv or I.kind in ('ds', 'dsw', 'vmem', 'dma', 'store'):
                req(lambda o: o.kind == 'mfma' and set(o.wr) & (rd | wr), 8)
            if isv:
                req(lambda o: o.kind == 'mfma' and set(o.srcc) & wr, 3)
                if I.kind != 'trans':
                    req(lambda o: o.kind == 'trans' and set(o.wr) & rd, 1)
                sg = {x for x in rd if x[0] == 's' or x == 'vcc'}
                if sg: req(lambda o: o.kind in VALU_KINDS and set(o.wr) & sg, 2)
                req(lambda o: o.kind == 'store' and o.extra.n >= 3 and set(o.extra.l()) & wr, 2)
            if I.kind in ('perm', 'dpp'):
                req(lambda o: o.kind in VALU_KINDS and set(o.wr) & rd, 2)
            if I.kind == 'rdlane':
                req(lambda o: o.kind in VALU_KINDS and set(o.wr) & rd, 1)
            if I.kind in ('vmem', 'dma', 'store'):
                sg = {x for x in rd if x[0] == 's'}
                req(lambda o: o.kind in VALU_KINDS and set(o.wr) & sg, 5)
            if I.kind == 'dma':
                req(lambda o: o.kind == 'salu' and 'm0' in o.wr, 1)
            if I.kind in ('ds', 'vmem'):
                req(lambda o: o.kind == 'store' and o.extra.n >= 3 and set(o.extra.l()) & wr, 1)
            if I.kind == 'salu':
                sg = {x for x in rd if x[0] == 's' or x == 'vcc'}
                req(lambda o: o.kind in VALU_KINDS and set(o.wr) & sg, 2)
            while need > 0:
                n = min(need, 16)
                emit(Ins(f"s_nop {n-1}", 'nop', extra=n)); stats['nop'] += n; need -= n
            emit(I)
            for x in I.wr: tags[x] = I.wtag
            if I.kind in ('ds',): pl.append((set(I.wr), None))
            if I.kind == 'dsw': pl.append((set(), None))
            if I.kind == 'smem': pl.append((set(I.wr), None))
            if I.kind == 'vmem': pv.append((set(I.wr), I.tag))
            if I.kind in ('dma', 'store'): pv.append((set(), I.tag))
        self.stats = stats
        self.out = out
        return "\n".join(o.text for o in out)

class Sched:
    def __init__(self, cap=9):
        self.bb = []; self.streams = {}; self.cap = cap
    def m(self, ins):
        self.bb.append(ins); return len(self.bb) - 1
    def f(self, stream, earliest, latest, ins):
        self.streams.setdefault(stream, []).append((earliest, latest, ins))
    def run(self):
        out = []
        n = len(self.bb)
        st = {}
        for k, v in self.streams.items():
            v = list(v)
            lat = 10 ** 9
            for i in range(len(v) - 1, -1, -1):
                lat = min(lat, v[i][1]); v[i] = (v[i][0], lat, v[i][2])
            for e, l, ins in v:
                assert e <= l, f"stream {k}: earliest {e} > latest {l} for {ins.text}"
            st[k] = v
        ptr = {k: 0 for k in st}
        for g in range(n + 1):
            used = self.bb[g].pre if g < n else 0
            while True:
                best = None
                for k, v in st.items():
                    p = ptr[k]
                    if p < len(v) and v[p][0] <= g:
                        if best is None or v[p][1] < st[best][ptr[best]][1]: best = k
                if best is None: break
                e, l, ins = st[best][ptr[best]]
                if l > g and used + ins.cost > self.cap and g < n: break
                out.append(ins); used += ins.cost; ptr[best] += 1
            if g < n: out.append(self.bb[g])
        for k, v in st.items():
            assert ptr[k] == len(v), f"stream {k} not drained"
        return out
```

```python
from asmlib import *
NAME = "adaLN_cond__sliding_block_cached__glu_gated_reglu__prompt"
KA = dict(x=0, k=8, v=16, wq=24, wo=32, bx=40, wg=48, wu=56, wd=64, c=72, wmod=80, out=88, dbg=96, ws=104)
WS_MOD = 0
WS_XN = 0x10000
PLANE = 0x240000
WS_XP = WS_XN + PLANE
WS_X1P = WS_XP + PLANE
WS_H2 = WS_X1P + PLANE
import os
WS_PART = int(os.environ.get('WSPART', '0x1000000'), 0)
WS_PART2 = WS_PART
WS_SIZE = WS_PART + 16 * PLANE
TGB = 18432

def sload(dst, off):
    return Ins(f"s_load_dwordx{dst.n} {dst}, s[0:1], {off}" if dst.n > 1 else f"s_load_dword {dst}, s[0:1], {off}", 'smem', [dst], [S(0, 2)])

def srd(dst, ptr, size, shift=0):
    o = []
    if shift:
        o.append(salu('s_sub_u32', dst[0], ptr[0], shift))
        o.append(salu('s_subb_u32', dst[1], ptr[1], 0))
    else:
        o.append(salu('s_mov_b32', dst[0], ptr[0]))
        o.append(salu('s_mov_b32', dst[1], ptr[1]))
    o.append(salu('s_mov_b32', dst[2], hex(size + shift)))
    o.append(salu('s_mov_b32', dst[3], '0x20000'))
    return o

def kernel_text(name, body, vgpr, accum, sgpr=102):
    return f""".text
.globl {name}
.p2align 8
.type {name},@function
{name}:
{body}
.section .rodata,"a"
.p2align 6
.amdhsa_kernel {name}
  .amdhsa_next_free_vgpr {vgpr}
  .amdhsa_next_free_sgpr {sgpr}
  .amdhsa_accum_offset {accum}
  .amdhsa_group_segment_fixed_size 0
  .amdhsa_kernarg_size 112
  .amdhsa_user_sgpr_count 2
  .amdhsa_user_sgpr_kernarg_segment_ptr 1
  .amdhsa_system_sgpr_workgroup_id_x 1
  .amdhsa_float_denorm_mode_32 3
.end_amdhsa_kernel
"""

def piece_lane_off(P, dst, lane, pitch, t0, t1):
    P.add(valu('v_lshrrev_b32', t0, 2, lane))
    P.add(valu('v_mul_u32_u24', t0, pitch, t0))
    P.add(valu('v_lshrrev_b32', t1, 3, lane))
    P.add(valu('v_and_b32', t1, 2, t1))
    P.add(valu('v_and_b32', dst, 3, lane))
    P.add(valu('v_xor_b32', dst, dst, t1))
    P.add(valu('v_lshl_add_u32', dst, dst, 4, t0))

def tr_addr(P, dst0, dst1, lane, t0, t1):
    P.add(valu('v_lshrrev_b32', t0, 2, lane))
    P.add(valu('v_lshlrev_b32', t0, 6, t0))
    P.add(valu('v_and_b32', t1, 3, lane))
    P.add(valu('v_lshl_add_u32', t0, t1, 3, t0))
    P.add(valu('v_lshlrev_b32', t1, 1, lane))
    P.add(valu('v_and_b32', t1, 32, t1))
    P.add(valu('v_add_u32', dst0, t0, t1))
    P.add(valu('v_xor_b32', dst1, 32, dst0))

WS_STAMP = 0xF00000
class Stamps:
    def __init__(self, on, kid, base=48): self.on = on; self.n = 0; self.kid = kid; self.base = base
    def stamp(self):
        if not self.on: return []
        i = self.n; self.n += 1
        assert self.base + 4 * i + 3 < 96
        r = S(self.base + 4 * i, 2); q = S(self.base + 4 * i + 2, 2)
        return [waitall(vm=False), Ins(f"s_memtime {r}", 'smem', [r], []), Ins(f"s_memrealtime {q}", 'smem', [q], []), waitall(vm=False)]
    def flush(self, pw, vt0, vt1, lane):
        if not self.on: return []
        o = []
        sr = S(96, 4)
        o += [salu('s_add_u32', sr[0], pw[0], WS_STAMP + self.kid * 0x10000), salu('s_addc_u32', sr[1], pw[1], 0),
              salu('s_mov_b32', sr[2], 0x10000), salu('s_mov_b32', sr[3], '0x20000')]
        o.append(salu('s_lshl_b32', S(100), S(2), 7))
        o.append(valu('v_mov_b32', vt1, 0))
        b = self.base
        for i in range(self.n):
            o.append(salu('s_sub_u32', S(101), S(b + 4 * i), S(b)))
            o.append(valu('v_mov_b32', vt0, S(101)))
            o.append(bstore('buffer_store_dword', vt0, vt1, sr, S(100), 4 * i))
            o.append(valu('v_mov_b32', vt0, S(b + 4 * i + 2)))
            o.append(bstore('buffer_store_dword', vt0, vt1, sr, S(100), 64 + 4 * i))
        o.append(valu('v_mov_b32', vt0, self.n))
        o.append(bstore('buffer_store_dword', vt0, vt1, sr, S(100), 60))
        return o

def spread(sc, stream, lst, g0, g1):
    n = sum(1 for x in lst if x.kind != 'salu')
    k = 0
    for ins in lst:
        g = g0 + (k * (g1 - g0)) // max(n, 1)
        sc.f(stream, g, g + 3, ins)
        if ins.kind != 'salu': k += 1
```

```python
import sys
from common import *
import importlib
def build(which, out, opts=None):
    opts = opts or {}
    hdr = []
    body = []
    spec = {
        'k0': ("k0_kernel grid=(364,1,1) block=(576,1,1) lds=4096", 'k0', 'gen_k0'),
        'k1': ("k1_kernel grid=(256,1,1) block=(256,1,1) lds=139264", 'k1', 'gen_k1'),
        'k2': ("k2_kernel grid=(256,1,1) block=(576,1,1) lds=1024", 'k24', 'gen_k2'),
        'k3': ("k3_kernel grid=(256,1,1) block=(256,1,1) lds=147456", 'k3', 'gen_k3'),
        'k4': ("k4_kernel grid=(256,1,1) block=(576,1,1) lds=0", 'k24', 'gen_k4'),
    }
    for k in which:
        l, m, f = spec[k]
        hdr.append("; @launch kernel=" + l)
        mod = importlib.import_module(m)
        t, P = getattr(mod, f)(opts.get(k))
        print(k, P.stats, len(P.out), file=sys.stderr)
        body.append(t)
    txt = "\n".join(hdr) + '\n.amdgcn_target "amdgcn-amd-amdhsa--gfx950"\n' + "\n".join(body)
    open(out, "w").write(txt)
    print(out, len(txt), file=sys.stderr)
if __name__ == "__main__":
    build(sys.argv[1].split(","), sys.argv[2], eval(sys.argv[3]) if len(sys.argv) > 3 else None)
```

```python
import re

def regs(cls, base, n=1):
    return [f"{cls}{base+i}" for i in range(n)]

def rtxt(cls, base, n=1):
    return f"{cls}{base}" if n == 1 else f"{cls}[{base}:{base+n-1}]"

class R:
    def __hash__(self): return hash((self.cls, self.base, self.n))
    def __eq__(self, o): return isinstance(o, R) and (self.cls, self.base, self.n) == (o.cls, o.base, o.n)
    def __init__(self, cls, base, n=1):
        self.cls, self.base, self.n = cls, base, n
    def __str__(self): return rtxt(self.cls, self.base, self.n)
    def l(self): return regs(self.cls, self.base, self.n)
    def __getitem__(self, i):
        if isinstance(i, slice):
            st = i.start or 0
            en = i.stop if i.stop is not None else self.n
            return R(self.cls, self.base + st, en - st)
        assert 0 <= i < self.n
        return R(self.cls, self.base + i, 1)
def V(b, n=1): return R('v', b, n)
def A(b, n=1): return R('a', b, n)
def S(b, n=1): return R('s', b, n)

def _l(x):
    out = []
    for e in x:
        if isinstance(e, R): out += e.l()
        elif isinstance(e, str): out.append(e)
    return out

TRANS = ('v_exp_f32', 'v_log_f32', 'v_rcp_f32', 'v_rsq_f32', 'v_sqrt_f32')

class Ins:
    __slots__ = ('text', 'kind', 'wr', 'rd', 'tag', 'srcc', 'cost', 'wtag', 'rtag', 'extra', 'ab', 'aw', 'pre')
    def __init__(self, text, kind, wr=(), rd=(), tag=None, srcc=(), cost=1, wtag=None, rtag=None, extra=None, ab=()):
        self.text, self.kind = text, kind
        self.wr, self.rd = _l(wr), _l(rd)
        self.tag = tag; self.srcc = _l(srcc); self.cost = cost
        self.wtag = wtag; self.rtag = rtag; self.extra = extra; self.ab = _l(ab); self.aw = []; self.pre = 0

def _op(x):
    return str(x)

def valu(op, dst, *src, mod="", wr_extra=(), rd_extra=(), wtag=None, rtag=None):
    kind = 'trans' if op in TRANS or op.replace('_e64', '') in TRANS else 'valu'
    rd = [s for s in src if isinstance(s, R)] + [s for s in src if s in ('vcc', 'm0', 'exec')] + list(rd_extra)
    txt = []
    for s in src:
        if isinstance(s, tuple):
            txt.append(s[0]); rd.append(s[1])
        else:
            txt.append(_op(s))
    wr = [dst] + list(wr_extra)
    if op.startswith('v_fmac') or op.startswith('v_permlane'):
        rd.append(dst)
    k2 = kind
    if op.startswith('v_permlane'):
        wr.append(src[0]); k2 = 'perm'
    if 'dpp' in op or 'row_' in mod or 'quad_perm' in mod: k2 = 'dpp'
    if op.startswith('v_readfirstlane') or op.startswith('v_readlane'): k2 = 'rdlane'
    t = f"{op} {_op(dst)}, " + ", ".join(txt) + (" " + mod if mod else "")
    return Ins(t, k2, wr, rd, cost=8 if kind == 'trans' else 4, wtag=wtag, rtag=rtag)

def salu(op, dst, *src):
    rd = [s for s in src if isinstance(s, R)] + [s for s in src if s in ('vcc', 'm0', 'exec', 'scc')]
    wr = [dst, 'scc'] if dst is not None else ['scc']
    if op.startswith('s_cselect') or op.startswith('s_addc') or op.startswith('s_subb'): rd.append('scc')
    if op.startswith('s_mov') or op.startswith('s_cselect') or op.startswith('s_mul_i32'):
        wr = [dst]
    ops = ([_op(dst)] if dst is not None else []) + [_op(s) for s in src]
    return Ins(f"{op} " + ", ".join(ops), 'salu', wr, rd, cost=4)

def mfma(d, a, b, c, wtag=None, rtag=None):
    rd = [a, b] + ([c] if isinstance(c, R) else [])
    return Ins(f"v_mfma_f32_16x16x32_bf16 {d}, {a}, {b}, {c}", 'mfma', [d], rd,
               srcc=[c] if isinstance(c, R) else [], cost=2, wtag=wtag, rtag=rtag, ab=[a, b])

def dsread(op, dst, addr, off=0, wtag=None):
    return Ins(f"{op} {dst}, {addr}" + (f" offset:{off}" if off else ""), 'ds', [dst], [addr], wtag=wtag, cost=5)

def dswrite(op, addr, data, off=0):
    return Ins(f"{op} {addr}, {data}" + (f" offset:{off}" if off else ""), 'dsw', [], [addr, data], cost=8)

def bload(op, dst, voff, srd, soff, off=0, flags="", tag=None, wtag=None):
    so = [soff] if isinstance(soff, R) else []
    return Ins(f"{op} {dst}, {voff}, {srd}, {soff} offen" + (f" offset:{off}" if off else "") + (" " + flags if flags else ""),
               'vmem', [dst], [voff, srd] + so, tag=tag, wtag=wtag, cost=4)

import os
def dma(voff, srd, soff, off=0, tag=None, flags=None):
    if flags is None: flags = os.environ.get('DMAF', '')
    so = [soff] if isinstance(soff, R) else []
    return Ins(f"buffer_load_dwordx4 {voff}, {srd}, {soff} offen" + (f" offset:{off}" if off else "") + (" " + flags if flags else "") + " lds",
               'dma', [], [voff, srd, 'm0'] + so, tag=tag, cost=4)

def bstore(op, data, voff, srd, soff, off=0, flags="", tag=None, rtag=None):
    so = [soff] if isinstance(soff, R) else []
    return Ins(f"{op} {data}, {voff}, {srd}, {soff} offen" + (f" offset:{off}" if off else "") + (" " + flags if flags else ""),
               'store', [], [data, voff, srd] + so, tag=tag, extra=data, rtag=rtag, cost=4)

def raw(text, kind='other', wr=(), rd=(), cost=4):
    return Ins(text, kind, wr, rd, cost=cost)

def waitvm(tag):
    return Ins("", 'waitvm', tag=tag, cost=4)
def waitall(vm=True, lgkm=True):
    return Ins("", 'waitall', extra=(vm, lgkm), cost=0)
def barrier():
    return Ins("s_barrier", 'barrier', cost=4)
def label(name):
    return Ins(f"{name}:", 'label', cost=0)
def comment(t):
    return Ins(f"; {t}", 'label', cost=0)

VALU_KINDS = ('valu', 'trans', 'perm', 'dpp', 'rdlane')

class Prog:
    def __init__(self):
        self.ins = []
    def add(self, *xs):
        for x in xs:
            if isinstance(x, (list, tuple)): self.add(*x)
            else: self.ins.append(x)

    def finalize(self, check_tags=True):
        out = []
        pl, pv = [], []
        tags = {}
        stats = dict(nop=0, wait=0)
        def emit(i): out.append(i)
        def states_since(pred, limit):
            n = 0
            for j in range(len(out) - 1, -1, -1):
                o = out[j]
                if o.kind == 'label':
                    continue
                if pred(o): return n
                if o.kind == 'nop': n += o.extra
                else: n += 1
                if n >= limit: return None
            return None
        for I in self.ins:
            if I.kind == 'label':
                emit(I); continue
            if I.kind == 'resetq':
                pl, pv = [], []; continue
            need_l = need_v = None
            if I.kind == 'waitvm':
                idx = [k for k, (r, t) in enumerate(pv) if t == I.tag]
                if idx: need_v = len(pv) - 1 - idx[-1]
            elif I.kind == 'waitall':
                if I.extra[0] and pv: need_v = 0
                if I.extra[1] and pl: need_l = 0
            else:
                touched = set(I.rd) | set(I.wr) | set(I.aw)
                for k in range(len(pl) - 1, -1, -1):
                    if pl[k][0] & touched:
                        need_l = len(pl) - 1 - k; break
                tv = touched if I.kind != 'vmem' else (set(I.rd) | set(I.aw))
                for k in range(len(pv) - 1, -1, -1):
                    if pv[k][0] & tv:
                        need_v = len(pv) - 1 - k; break
            if need_l is not None or need_v is not None:
                parts = []
                if need_v is not None:
                    n = min(need_v, 63); parts.append(f"vmcnt({n})"); pv = pv[len(pv) - n:] if n else []
                if need_l is not None:
                    n = min(need_l, 15); parts.append(f"lgkmcnt({n})"); pl = pl[len(pl) - n:] if n else []
                emit(Ins("s_waitcnt " + " ".join(parts), 'wait')); stats['wait'] += 1
            if I.kind in ('waitvm', 'waitall'): continue
            if check_tags and I.rtag:
                for r, t in I.rtag.items():
                    for x in r.l():
                        assert tags.get(x) == t, f"tag mismatch at '{I.text}': {x} has {tags.get(x)} expected {t}"
            need = 0
            rd, wr = set(I.rd), set(I.wr)
            def req(pred, n):
                nonlocal need
                s = states_since(pred, n)
                if s is not None and s < n: need = max(need, n - s)
            isv = I.kind in VALU_KINDS
            if I.kind == 'mfma':
                req(lambda o: o.kind in VALU_KINDS and set(o.wr) & rd, 2)
                ab = set(I.ab)
                req(lambda o: o.kind == 'mfma' and set(o.wr) & ab, 8)
                c = set(I.srcc)
                req(lambda o: o.kind == 'mfma' and (set(o.wr) & c) and set(o.wr) != c, 6)
                req(lambda o: o.kind == 'mfma' and (set(o.wr) & wr) and set(o.wr) != c, 6)
            if isv or I.kind in ('ds', 'dsw', 'vmem', 'dma', 'store'):
                req(lambda o: o.kind == 'mfma' and set(o.wr) & (rd | wr), 8)
            if isv:
                req(lambda o: o.kind == 'mfma' and set(o.srcc) & wr, 3)
                if I.kind != 'trans':
                    req(lambda o: o.kind == 'trans' and set(o.wr) & rd, 1)
                sg = {x for x in rd if x[0] == 's' or x == 'vcc'}
                if sg: req(lambda o: o.kind in VALU_KINDS and set(o.wr) & sg, 2)
                req(lambda o: o.kind == 'store' and o.extra.n >= 3 and set(o.extra.l()) & wr, 2)
            if I.kind in ('perm', 'dpp'):
                req(lambda o: o.kind in VALU_KINDS and set(o.wr) & rd, 2)
            if I.kind == 'rdlane':
                req(lambda o: o.kind in VALU_KINDS and set(o.wr) & rd, 1)
            if I.kind in ('vmem', 'dma', 'store'):
                sg = {x for x in rd if x[0] == 's'}
                req(lambda o: o.kind in VALU_KINDS and set(o.wr) & sg, 5)
            if I.kind == 'dma':
                req(lambda o: o.kind == 'salu' and 'm0' in o.wr, 1)
            if I.kind in ('ds', 'vmem'):
                req(lambda o: o.kind == 'store' and o.extra.n >= 3 and set(o.extra.l()) & wr, 1)
            if I.kind == 'salu':
                sg = {x for x in rd if x[0] == 's' or x == 'vcc'}
                req(lambda o: o.kind in VALU_KINDS and set(o.wr) & sg, 2)
            while need > 0:
                n = min(need, 16)
                emit(Ins(f"s_nop {n-1}", 'nop', extra=n)); stats['nop'] += n; need -= n
            emit(I)
            for x in I.wr: tags[x] = I.wtag
            if I.kind in ('ds',): pl.append((set(I.wr), None))
            if I.kind == 'dsw': pl.append((set(), None))
            if I.kind == 'smem': pl.append((set(I.wr), None))
            if I.kind == 'vmem': pv.append((set(I.wr), I.tag))
            if I.kind in ('dma', 'store'): pv.append((set(), I.tag))
        self.stats = stats
        self.out = out
        return "\n".join(o.text for o in out)

class Sched:
    def __init__(self, cap=9):
        self.bb = []; self.streams = {}; self.cap = cap
    def m(self, ins):
        self.bb.append(ins); return len(self.bb) - 1
    def f(self, stream, earliest, latest, ins):
        self.streams.setdefault(stream, []).append((earliest, latest, ins))
    def run(self):
        out = []
        n = len(self.bb)
        st = {}
        for k, v in self.streams.items():
            v = list(v)
            lat = 10 ** 9
            for i in range(len(v) - 1, -1, -1):
                lat = min(lat, v[i][1]); v[i] = (v[i][0], lat, v[i][2])
            for e, l, ins in v:
                assert e <= l, f"stream {k}: earliest {e} > latest {l} for {ins.text}"
            st[k] = v
        ptr = {k: 0 for k in st}
        for g in range(n + 1):
            used = self.bb[g].pre if g < n else 0
            while True:
                best = None
                for k, v in st.items():
                    p = ptr[k]
                    if p < len(v) and v[p][0] <= g:
                        if best is None or v[p][1] < st[best][ptr[best]][1]: best = k
                if best is None: break
                e, l, ins = st[best][ptr[best]]
                if l > g and used + ins.cost > self.cap and g < n: break
                out.append(ins); used += ins.cost; ptr[best] += 1
            if g < n: out.append(self.bb[g])
        for k, v in st.items():
            assert ptr[k] == len(v), f"stream {k} not drained"
        return out

def group(lst):
    g = Ins("\n".join(x.text for x in lst), 'salu', cost=sum(x.cost for x in lst))
    for x in lst:
        g.wr += x.wr; g.rd += x.rd
    return g
```

```python
from asmlib import *
NAME = "adaLN_cond__sliding_block_cached__glu_gated_reglu__prompt"
KA = dict(x=0, k=8, v=16, wq=24, wo=32, bx=40, wg=48, wu=56, wd=64, c=72, wmod=80, out=88, dbg=96, ws=104)
WS_MOD = 0
WS_FLAG = 0x8000
WS_XN = 0x10000
PLANE = 0x240000
WS_XP = WS_XN + PLANE
WS_X1P = WS_XP + PLANE
WS_H2 = WS_X1P + PLANE
import os
WS_PART = int(os.environ.get('WSPART', '0x1000000'), 0)
WS_PART2 = WS_PART
WS_SIZE = WS_PART + 16 * PLANE
TGB = 18432

def sload(dst, off):
    return Ins(f"s_load_dwordx{dst.n} {dst}, s[0:1], {off}" if dst.n > 1 else f"s_load_dword {dst}, s[0:1], {off}", 'smem', [dst], [S(0, 2)])

def srd(dst, ptr, size, shift=0):
    o = []
    if shift:
        o.append(salu('s_sub_u32', dst[0], ptr[0], shift))
        o.append(salu('s_subb_u32', dst[1], ptr[1], 0))
    else:
        o.append(salu('s_mov_b32', dst[0], ptr[0]))
        o.append(salu('s_mov_b32', dst[1], ptr[1]))
    o.append(salu('s_mov_b32', dst[2], hex(size + shift)))
    o.append(salu('s_mov_b32', dst[3], '0x20000'))
    return o

def kernel_text(name, body, vgpr, accum, sgpr=102):
    return f""".text
.globl {name}
.p2align 8
.type {name},@function
{name}:
{body}
.section .rodata,"a"
.p2align 6
.amdhsa_kernel {name}
  .amdhsa_next_free_vgpr {vgpr}
  .amdhsa_next_free_sgpr {sgpr}
  .amdhsa_accum_offset {accum}
  .amdhsa_group_segment_fixed_size 0
  .amdhsa_kernarg_size 112
  .amdhsa_user_sgpr_count 2
  .amdhsa_user_sgpr_kernarg_segment_ptr 1
  .amdhsa_system_sgpr_workgroup_id_x 1
  .amdhsa_float_denorm_mode_32 3
.end_amdhsa_kernel
"""

def piece_lane_off(P, dst, lane, pitch, t0, t1):
    P.add(valu('v_lshrrev_b32', t0, 2, lane))
    P.add(valu('v_mul_u32_u24', t0, pitch, t0))
    P.add(valu('v_lshrrev_b32', t1, 3, lane))
    P.add(valu('v_and_b32', t1, 2, t1))
    P.add(valu('v_and_b32', dst, 3, lane))
    P.add(valu('v_xor_b32', dst, dst, t1))
    P.add(valu('v_lshl_add_u32', dst, dst, 4, t0))

def tr_addr(P, dst0, dst1, lane, t0, t1):
    P.add(valu('v_lshrrev_b32', t0, 2, lane))
    P.add(valu('v_lshlrev_b32', t0, 6, t0))
    P.add(valu('v_and_b32', t1, 3, lane))
    P.add(valu('v_lshl_add_u32', t0, t1, 3, t0))
    P.add(valu('v_lshlrev_b32', t1, 1, lane))
    P.add(valu('v_and_b32', t1, 32, t1))
    P.add(valu('v_add_u32', dst0, t0, t1))
    P.add(valu('v_xor_b32', dst1, 32, dst0))

WS_STAMP = 0xF00000
class Stamps:
    def __init__(self, on, kid, base=48): self.on = on; self.n = 0; self.kid = kid; self.base = base
    def stamp(self):
        if not self.on: return []
        i = self.n; self.n += 1
        assert self.base + 4 * i + 3 < 88
        r = S(self.base + 4 * i, 2); q = S(self.base + 4 * i + 2, 2)
        return [waitall(vm=False), Ins(f"s_memtime {r}", 'smem', [r], []), Ins(f"s_memrealtime {q}", 'smem', [q], []), waitall(vm=False)]
    def flush(self, pw, vt0, vt1, lane):
        if not self.on: return []
        o = []
        sr = S(96, 4)
        o += [salu('s_add_u32', sr[0], pw[0], WS_STAMP + self.kid * 0x10000), salu('s_addc_u32', sr[1], pw[1], 0),
              salu('s_mov_b32', sr[2], 0x10000), salu('s_mov_b32', sr[3], '0x20000')]
        o.append(salu('s_lshl_b32', S(100), S(2), 7))
        o.append(valu('v_mov_b32', vt1, 0))
        b = self.base
        for i in range(self.n):
            o.append(salu('s_sub_u32', S(101), S(b + 4 * i), S(b)))
            o.append(valu('v_mov_b32', vt0, S(101)))
            o.append(bstore('buffer_store_dword', vt0, vt1, sr, S(100), 4 * i))
            o.append(valu('v_mov_b32', vt0, S(b + 4 * i + 2)))
            o.append(bstore('buffer_store_dword', vt0, vt1, sr, S(100), 64 + 4 * i))
        o.append(valu('v_mov_b32', vt0, self.n))
        o.append(bstore('buffer_store_dword', vt0, vt1, sr, S(100), 60))
        return o

def spread(sc, stream, lst, g0, g1):
    n = sum(1 for x in lst if x.kind != 'salu')
    k = 0
    for ins in lst:
        g = g0 + (k * (g1 - g0)) // max(n, 1)
        sc.f(stream, g, g + 3, ins)
        if ins.kind != 'salu': k += 1

MAP = os.environ.get('MAP', 'head')
def map_big(P, sSplit, sRB, t0, t1, t2):
    P.add(salu('s_and_b32', t0, S(2), 7))
    P.add(salu('s_lshr_b32', t1, S(2), 3))
    if MAP == 'head':
        P.add(salu('s_and_b32', t2, t1, 1))
        P.add(salu('s_lshl_b32', sSplit, t0, 1))
        P.add(salu('s_add_u32', sSplit, sSplit, t2))
        P.add(salu('s_lshr_b32', sRB, t1, 1))
    elif MAP == 'row':
        P.add(salu('s_and_b32', t2, t1, 1))
        P.add(salu('s_lshl_b32', sRB, t0, 1))
        P.add(salu('s_add_u32', sRB, sRB, t2))
        P.add(salu('s_lshr_b32', sSplit, t1, 1))
    elif MAP == 'hyb':
        P.add(salu('s_lshr_b32', sRB, t0, 1))
        P.add(salu('s_lshl_b32', sRB, sRB, 2))
        P.add(salu('s_and_b32', t2, t1, 3))
        P.add(salu('s_add_u32', sRB, sRB, t2))
        P.add(salu('s_and_b32', sSplit, t0, 1))
        P.add(salu('s_lshl_b32', sSplit, sSplit, 3))
        P.add(salu('s_lshr_b32', t2, t1, 2))
        P.add(salu('s_add_u32', sSplit, sSplit, t2))
def map_small(P, dst, wg, t0):
    if MAP == 'head':
        P.add(salu('s_mov_b32', dst, wg))
    else:
        P.add(salu('s_and_b32', t0, wg, 7))
        P.add(salu('s_lshl_b32', t0, t0, 5))
        P.add(salu('s_lshr_b32', dst, wg, 3))
        P.add(salu('s_add_u32', dst, dst, t0))

def pace(sc, stream, items, g0, g1, slack=2):
    its = [(x if isinstance(x, tuple) else (g0, x)) for x in items]
    tot = sum(i.cost for _, i in its); cum = 0
    for mn, ins in its:
        g = g0 + int(cum * (g1 - g0 + 1) / tot)
        g = min(max(g, mn), g1)
        sc.f(stream, g, min(g + slack, g1), ins)
        cum += ins.cost
```

```python
import sys
from common import *
import importlib
def build(which, out, opts=None):
    opts = opts or {}
    hdr = []
    body = []
    spec = {
        'k0': ("k0_kernel grid=(368,1,1) block=(576,1,1) lds=4096", 'k0', 'gen_k0'),
        'k1': ("k1_kernel grid=(256,1,1) block=(256,1,1) lds=163840", 'k1', 'gen_k1'),
        'k2': ("k2_kernel grid=(256,1,1) block=(576,1,1) lds=1024", 'k24', 'gen_k2'),
        'k3': ("k3_kernel grid=(256,1,1) block=(256,1,1) lds=163840", 'k3', 'gen_k3'),
        'k4': ("k4_kernel grid=(256,1,1) block=(576,1,1) lds=0", 'k24', 'gen_k4'),
    }
    for k in which:
        l, m, f = spec[k]
        hdr.append("; @launch kernel=" + l)
        mod = importlib.import_module(m)
        t, P = getattr(mod, f)(opts.get(k))
        print(k, P.stats, len(P.out), file=sys.stderr)
        body.append(t)
    doc = """; adaLN block: x + ga*Attn(LN(x)*(1+ca)+sa) then + gb*ReGLU-FFN(LN(.)*(1+cb)+sb).  Emitted by my own generator (gen/*.py).
"""
    txt = doc + "\n".join(hdr) + '\n.amdgcn_target "amdgcn-amd-amdhsa--gfx950"\n' + "\n".join(body)
    open(out, "w").write(txt)
    print(out, len(txt), file=sys.stderr)
if __name__ == "__main__":
    build(sys.argv[1].split(","), sys.argv[2], eval(sys.argv[3]) if len(sys.argv) > 3 else None)
```

```python
from asmlib import *
NAME = "adaLN_cond__sliding_block_cached__glu_gated_reglu__prompt"
KA = dict(x=0, k=8, v=16, wq=24, wo=32, bx=40, wg=48, wu=56, wd=64, c=72, wmod=80, out=88, dbg=96, ws=104)
WS_MOD = 0
WS_FLAG = 0x8000
WS_XN = 0x10000
PLANE = 0x240000
WS_XP = WS_XN + PLANE
WS_X1P = WS_XP + PLANE
WS_H2 = WS_X1P + PLANE
import os
WS_PART = int(os.environ.get('WSPART', '0x1000000'), 0)
WS_PART2 = WS_PART
WS_SIZE = WS_PART + 16 * PLANE
TGB = 18432

def sload(dst, off):
    return Ins(f"s_load_dwordx{dst.n} {dst}, s[0:1], {off}" if dst.n > 1 else f"s_load_dword {dst}, s[0:1], {off}", 'smem', [dst], [S(0, 2)])

def srd(dst, ptr, size, shift=0):
    o = []
    if shift:
        o.append(salu('s_sub_u32', dst[0], ptr[0], shift))
        o.append(salu('s_subb_u32', dst[1], ptr[1], 0))
    else:
        o.append(salu('s_mov_b32', dst[0], ptr[0]))
        o.append(salu('s_mov_b32', dst[1], ptr[1]))
    o.append(salu('s_mov_b32', dst[2], hex(size + shift)))
    o.append(salu('s_mov_b32', dst[3], '0x20000'))
    return o

def kernel_text(name, body, vgpr, accum, sgpr=102):
    return f""".text
.globl {name}
.p2align 8
.type {name},@function
{name}:
{body}
.section .rodata,"a"
.p2align 6
.amdhsa_kernel {name}
  .amdhsa_next_free_vgpr {vgpr}
  .amdhsa_next_free_sgpr {sgpr}
  .amdhsa_accum_offset {accum}
  .amdhsa_group_segment_fixed_size 0
  .amdhsa_kernarg_size 112
  .amdhsa_user_sgpr_count 2
  .amdhsa_user_sgpr_kernarg_segment_ptr 1
  .amdhsa_system_sgpr_workgroup_id_x 1
  .amdhsa_float_denorm_mode_32 3
.end_amdhsa_kernel
"""

def piece_lane_off(P, dst, lane, pitch, t0, t1):
    P.add(valu('v_lshrrev_b32', t0, 2, lane))
    P.add(valu('v_mul_u32_u24', t0, pitch, t0))
    P.add(valu('v_lshrrev_b32', t1, 3, lane))
    P.add(valu('v_and_b32', t1, 2, t1))
    P.add(valu('v_and_b32', dst, 3, lane))
    P.add(valu('v_xor_b32', dst, dst, t1))
    P.add(valu('v_lshl_add_u32', dst, dst, 4, t0))

def tr_addr(P, dst0, dst1, lane, t0, t1):
    P.add(valu('v_lshrrev_b32', t0, 2, lane))
    P.add(valu('v_lshlrev_b32', t0, 6, t0))
    P.add(valu('v_and_b32', t1, 3, lane))
    P.add(valu('v_lshl_add_u32', t0, t1, 3, t0))
    P.add(valu('v_lshlrev_b32', t1, 1, lane))
    P.add(valu('v_and_b32', t1, 32, t1))
    P.add(valu('v_add_u32', dst0, t0, t1))
    P.add(valu('v_xor_b32', dst1, 32, dst0))

WS_STAMP = 0xF00000
class Stamps:
    def __init__(self, on, kid, base=48): self.on = on; self.n = 0; self.kid = kid; self.base = base
    def stamp(self):
        if not self.on: return []
        i = self.n; self.n += 1
        assert self.base + 4 * i + 3 < 88
        r = S(self.base + 4 * i, 2); q = S(self.base + 4 * i + 2, 2)
        return [waitall(vm=False), Ins(f"s_memtime {r}", 'smem', [r], []), Ins(f"s_memrealtime {q}", 'smem', [q], []), waitall(vm=False)]
    def flush(self, pw, vt0, vt1, lane):
        if not self.on: return []
        o = []
        sr = S(96, 4)
        o += [salu('s_add_u32', sr[0], pw[0], WS_STAMP + self.kid * 0x10000), salu('s_addc_u32', sr[1], pw[1], 0),
              salu('s_mov_b32', sr[2], 0x10000), salu('s_mov_b32', sr[3], '0x20000')]
        o.append(salu('s_lshl_b32', S(100), S(2), 7))
        o.append(valu('v_mov_b32', vt1, 0))
        b = self.base
        for i in range(self.n):
            o.append(salu('s_sub_u32', S(101), S(b + 4 * i), S(b)))
            o.append(valu('v_mov_b32', vt0, S(101)))
            o.append(bstore('buffer_store_dword', vt0, vt1, sr, S(100), 4 * i))
            o.append(valu('v_mov_b32', vt0, S(b + 4 * i + 2)))
            o.append(bstore('buffer_store_dword', vt0, vt1, sr, S(100), 64 + 4 * i))
        o.append(valu('v_mov_b32', vt0, self.n))
        o.append(bstore('buffer_store_dword', vt0, vt1, sr, S(100), 60))
        return o

def spread(sc, stream, lst, g0, g1):
    n = sum(1 for x in lst if x.kind != 'salu')
    k = 0
    for ins in lst:
        g = g0 + (k * (g1 - g0)) // max(n, 1)
        sc.f(stream, g, g + 3, ins)
        if ins.kind != 'salu': k += 1

MAP = os.environ.get('MAP', 'head')
def map_big(P, sSplit, sRB, t0, t1, t2):
    P.add(salu('s_and_b32', t0, S(2), 7))
    P.add(salu('s_lshr_b32', t1, S(2), 3))
    if MAP == 'head':
        P.add(salu('s_and_b32', t2, t1, 1))
        P.add(salu('s_lshl_b32', sSplit, t0, 1))
        P.add(salu('s_add_u32', sSplit, sSplit, t2))
        P.add(salu('s_lshr_b32', sRB, t1, 1))
    elif MAP == 'row':
        P.add(salu('s_and_b32', t2, t1, 1))
        P.add(salu('s_lshl_b32', sRB, t0, 1))
        P.add(salu('s_add_u32', sRB, sRB, t2))
        P.add(salu('s_lshr_b32', sSplit, t1, 1))
    elif MAP == 'hyb':
        P.add(salu('s_lshr_b32', sRB, t0, 1))
        P.add(salu('s_lshl_b32', sRB, sRB, 2))
        P.add(salu('s_and_b32', t2, t1, 3))
        P.add(salu('s_add_u32', sRB, sRB, t2))
        P.add(salu('s_and_b32', sSplit, t0, 1))
        P.add(salu('s_lshl_b32', sSplit, sSplit, 3))
        P.add(salu('s_lshr_b32', t2, t1, 2))
        P.add(salu('s_add_u32', sSplit, sSplit, t2))
def map_small(P, dst, wg, t0):
    if MAP == 'head':
        P.add(salu('s_mov_b32', dst, wg))
    else:
        P.add(salu('s_and_b32', t0, wg, 7))
        P.add(salu('s_lshl_b32', t0, t0, 5))
        P.add(salu('s_lshr_b32', dst, wg, 3))
        P.add(salu('s_add_u32', dst, dst, t0))

def pace(sc, stream, items, g0, g1, slack=2):
    its = [(x if isinstance(x, tuple) else (g0, x)) for x in items]
    tot = sum(i.cost for _, i in its); cum = 0
    for mn, ins in its:
        g = g0 + int(cum * (g1 - g0 + 1) / tot)
        g = min(max(g, mn), g1)
        sc.f(stream, g, min(g + slack, g1), ins)
        cum += ins.cost

def code_srd(dst, start, end, here):
    return [raw(f"s_getpc_b64 {dst[0:2]}\n{here}:", 'salu', [dst[0:2]], []),
            group([raw(f"s_add_u32 {dst[0]}, {dst[0]}, {start}-{here}", 'salu', [dst[0], 'scc'], [dst[0]]),
                   raw(f"s_addc_u32 {dst[1]}, {dst[1]}, ({start}-{here})>>32", 'salu', [dst[1], 'scc'], [dst[1], 'scc'])]),
            raw(f"s_mov_b32 {dst[2]}, {end}-{start}", 'salu', [dst[2]], []),
            salu('s_mov_b32', dst[3], '0x20000')]
```

```python
from asmlib import *
import os
NAME = "adaLN_cond__sliding_block_cached__glu_gated_reglu__prompt"
KA = dict(x=0, k=8, v=16, wq=24, wo=32, bx=40, wg=48, wu=56, wd=64, c=72, wmod=80, out=88, dbg=96, ws=104)
WS_MOD = 0
WS_FLAG = 0x980000
FSTR = int(os.environ.get('FSTR', '4'))
FGRP = max(128, 16 * FSTR)
WS_XN = 0x10000
PLANE = 0x240000
WS_XP = WS_XN + PLANE
WS_X1P = WS_XP + PLANE
WS_H2 = WS_X1P + PLANE
import os
WS_PART = int(os.environ.get('WSPART', '0x1000000'), 0)
WS_PART2 = WS_PART
WS_SIZE = WS_PART + 16 * PLANE
TGB = 18432

def sload(dst, off):
    return Ins(f"s_load_dwordx{dst.n} {dst}, s[0:1], {off}" if dst.n > 1 else f"s_load_dword {dst}, s[0:1], {off}", 'smem', [dst], [S(0, 2)])

def srd(dst, ptr, size, shift=0):
    o = []
    if shift:
        o.append(salu('s_sub_u32', dst[0], ptr[0], shift))
        o.append(salu('s_subb_u32', dst[1], ptr[1], 0))
    else:
        o.append(salu('s_mov_b32', dst[0], ptr[0]))
        o.append(salu('s_mov_b32', dst[1], ptr[1]))
    o.append(salu('s_mov_b32', dst[2], hex(size + shift)))
    o.append(salu('s_mov_b32', dst[3], '0x20000'))
    return o

def kernel_text(name, body, vgpr, accum, sgpr=102):
    return f""".text
.globl {name}
.p2align 8
.type {name},@function
{name}:
{body}
.section .rodata,"a"
.p2align 6
.amdhsa_kernel {name}
  .amdhsa_next_free_vgpr {vgpr}
  .amdhsa_next_free_sgpr {sgpr}
  .amdhsa_accum_offset {accum}
  .amdhsa_group_segment_fixed_size 0
  .amdhsa_kernarg_size 112
  .amdhsa_user_sgpr_count 2
  .amdhsa_user_sgpr_kernarg_segment_ptr 1
  .amdhsa_system_sgpr_workgroup_id_x 1
  .amdhsa_float_denorm_mode_32 3
.end_amdhsa_kernel
"""

def piece_lane_off(P, dst, lane, pitch, t0, t1):
    P.add(valu('v_lshrrev_b32', t0, 2, lane))
    P.add(valu('v_mul_u32_u24', t0, pitch, t0))
    P.add(valu('v_lshrrev_b32', t1, 3, lane))
    P.add(valu('v_and_b32', t1, 2, t1))
    P.add(valu('v_and_b32', dst, 3, lane))
    P.add(valu('v_xor_b32', dst, dst, t1))
    P.add(valu('v_lshl_add_u32', dst, dst, 4, t0))

def tr_addr(P, dst0, dst1, lane, t0, t1):
    P.add(valu('v_lshrrev_b32', t0, 2, lane))
    P.add(valu('v_lshlrev_b32', t0, 6, t0))
    P.add(valu('v_and_b32', t1, 3, lane))
    P.add(valu('v_lshl_add_u32', t0, t1, 3, t0))
    P.add(valu('v_lshlrev_b32', t1, 1, lane))
    P.add(valu('v_and_b32', t1, 32, t1))
    P.add(valu('v_add_u32', dst0, t0, t1))
    P.add(valu('v_xor_b32', dst1, 32, dst0))

WS_STAMP = 0xF00000
class Stamps:
    def __init__(self, on, kid, base=48): self.on = on; self.n = 0; self.kid = kid; self.base = base
    def stamp(self):
        if not self.on: return []
        i = self.n; self.n += 1
        assert self.base + 4 * i + 3 < 84
        r = S(self.base + 4 * i, 2); q = S(self.base + 4 * i + 2, 2)
        return [waitall(vm=False), Ins(f"s_memtime {r}", 'smem', [r], []), Ins(f"s_memrealtime {q}", 'smem', [q], []), waitall(vm=False)]
    def flush(self, pw, vt0, vt1, lane):
        if not self.on: return []
        o = []
        sr = S(96, 4)
        o += [salu('s_add_u32', sr[0], pw[0], WS_STAMP + self.kid * 0x10000), salu('s_addc_u32', sr[1], pw[1], 0),
              salu('s_mov_b32', sr[2], 0x10000), salu('s_mov_b32', sr[3], '0x20000')]
        o.append(salu('s_lshl_b32', S(100), S(2), 7))
        o.append(valu('v_mov_b32', vt1, 0))
        b = self.base
        for i in range(self.n):
            o.append(salu('s_sub_u32', S(101), S(b + 4 * i), S(b)))
            o.append(valu('v_mov_b32', vt0, S(101)))
            o.append(bstore('buffer_store_dword', vt0, vt1, sr, S(100), 4 * i))
            o.append(valu('v_mov_b32', vt0, S(b + 4 * i + 2)))
            o.append(bstore('buffer_store_dword', vt0, vt1, sr, S(100), 64 + 4 * i))
        o.append(valu('v_mov_b32', vt0, self.n))
        o.append(bstore('buffer_store_dword', vt0, vt1, sr, S(100), 60))
        return o

def spread(sc, stream, lst, g0, g1):
    n = sum(1 for x in lst if x.kind != 'salu')
    k = 0
    for ins in lst:
        g = g0 + (k * (g1 - g0)) // max(n, 1)
        sc.f(stream, g, g + 3, ins)
        if ins.kind != 'salu': k += 1

MAP = os.environ.get('MAP', 'head')
def map_big(P, sSplit, sRB, t0, t1, t2):
    P.add(salu('s_and_b32', t0, S(2), 7))
    P.add(salu('s_lshr_b32', t1, S(2), 3))
    if MAP == 'head':
        P.add(salu('s_and_b32', t2, t1, 1))
        P.add(salu('s_lshl_b32', sSplit, t0, 1))
        P.add(salu('s_add_u32', sSplit, sSplit, t2))
        P.add(salu('s_lshr_b32', sRB, t1, 1))
    elif MAP == 'row':
        P.add(salu('s_and_b32', t2, t1, 1))
        P.add(salu('s_lshl_b32', sRB, t0, 1))
        P.add(salu('s_add_u32', sRB, sRB, t2))
        P.add(salu('s_lshr_b32', sSplit, t1, 1))
    elif MAP == 'hyb':
        P.add(salu('s_lshr_b32', sRB, t0, 1))
        P.add(salu('s_lshl_b32', sRB, sRB, 2))
        P.add(salu('s_and_b32', t2, t1, 3))
        P.add(salu('s_add_u32', sRB, sRB, t2))
        P.add(salu('s_and_b32', sSplit, t0, 1))
        P.add(salu('s_lshl_b32', sSplit, sSplit, 3))
        P.add(salu('s_lshr_b32', t2, t1, 2))
        P.add(salu('s_add_u32', sSplit, sSplit, t2))
def map_small(P, dst, wg, t0):
    if MAP == 'head':
        P.add(salu('s_mov_b32', dst, wg))
    else:
        P.add(salu('s_and_b32', t0, wg, 7))
        P.add(salu('s_lshl_b32', t0, t0, 5))
        P.add(salu('s_lshr_b32', dst, wg, 3))
        P.add(salu('s_add_u32', dst, dst, t0))

def pace(sc, stream, items, g0, g1, slack=2):
    its = [(x if isinstance(x, tuple) else (g0, x)) for x in items]
    tot = sum(i.cost for _, i in its); cum = 0
    for mn, ins in its:
        g = g0 + int(cum * (g1 - g0 + 1) / tot)
        g = min(max(g, mn), g1)
        sc.f(stream, g, min(g + slack, g1), ins)
        cum += ins.cost

def code_srd(dst, start, end, here):
    return [raw(f"s_getpc_b64 {dst[0:2]}\n{here}:", 'salu', [dst[0:2]], []),
            group([raw(f"s_add_u32 {dst[0]}, {dst[0]}, {start}-{here}", 'salu', [dst[0], 'scc'], [dst[0]]),
                   raw(f"s_addc_u32 {dst[1]}, {dst[1]}, ({start}-{here})>>32", 'salu', [dst[1], 'scc'], [dst[1], 'scc'])]),
            raw(f"s_mov_b32 {dst[2]}, {end}-{start}", 'salu', [dst[2]], []),
            salu('s_mov_b32', dst[3], '0x20000')]
```

```python
from asmlib import *
import os
NAME = "adaLN_cond__sliding_block_cached__glu_gated_reglu__prompt"
KA = dict(x=0, k=8, v=16, wq=24, wo=32, bx=40, wg=48, wu=56, wd=64, c=72, wmod=80, out=88, dbg=96, ws=104)
WS_MOD = 0
WS_FLAG = 0x980000
FSTR = int(os.environ.get('FSTR', '4'))
FGRP = max(128, 16 * FSTR)
WS_XN = 0x10000
PLANE = 0x240000
WS_XP = WS_XN + PLANE
WS_X1P = WS_XP + PLANE
WS_H2 = WS_X1P + PLANE
import os
WS_PART = int(os.environ.get('WSPART', '0x1000000'), 0)
WS_PART2 = WS_PART
WS_SIZE = WS_PART + 16 * PLANE
TGB = 18432

def sload(dst, off):
    return Ins(f"s_load_dwordx{dst.n} {dst}, s[0:1], {off}" if dst.n > 1 else f"s_load_dword {dst}, s[0:1], {off}", 'smem', [dst], [S(0, 2)])

def srd(dst, ptr, size, shift=0):
    o = []
    if shift:
        o.append(salu('s_sub_u32', dst[0], ptr[0], shift))
        o.append(salu('s_subb_u32', dst[1], ptr[1], 0))
    else:
        o.append(salu('s_mov_b32', dst[0], ptr[0]))
        o.append(salu('s_mov_b32', dst[1], ptr[1]))
    o.append(salu('s_mov_b32', dst[2], hex(size + shift)))
    o.append(salu('s_mov_b32', dst[3], '0x20000'))
    return o

def kernel_text(name, body, vgpr, accum, sgpr=102):
    return f""".text
.globl {name}
.p2align 8
.type {name},@function
{name}:
{body}
.section .rodata,"a"
.p2align 6
.amdhsa_kernel {name}
  .amdhsa_next_free_vgpr {vgpr}
  .amdhsa_next_free_sgpr {sgpr}
  .amdhsa_accum_offset {accum}
  .amdhsa_group_segment_fixed_size 0
  .amdhsa_kernarg_size 112
  .amdhsa_user_sgpr_count 2
  .amdhsa_user_sgpr_kernarg_segment_ptr 1
  .amdhsa_system_sgpr_workgroup_id_x 1
  .amdhsa_float_denorm_mode_32 3
.end_amdhsa_kernel
"""

def piece_lane_off(P, dst, lane, pitch, t0, t1):
    P.add(valu('v_lshrrev_b32', t0, 2, lane))
    P.add(valu('v_mul_u32_u24', t0, pitch, t0))
    P.add(valu('v_lshrrev_b32', t1, 3, lane))
    P.add(valu('v_and_b32', t1, 2, t1))
    P.add(valu('v_and_b32', dst, 3, lane))
    P.add(valu('v_xor_b32', dst, dst, t1))
    P.add(valu('v_lshl_add_u32', dst, dst, 4, t0))

def tr_addr(P, dst0, dst1, lane, t0, t1):
    P.add(valu('v_lshrrev_b32', t0, 2, lane))
    P.add(valu('v_lshlrev_b32', t0, 6, t0))
    P.add(valu('v_and_b32', t1, 3, lane))
    P.add(valu('v_lshl_add_u32', t0, t1, 3, t0))
    P.add(valu('v_lshlrev_b32', t1, 1, lane))
    P.add(valu('v_and_b32', t1, 32, t1))
    P.add(valu('v_add_u32', dst0, t0, t1))
    P.add(valu('v_xor_b32', dst1, 32, dst0))

WS_STAMP = 0xF00000
class Stamps:
    def __init__(self, on, kid, base=48): self.on = on; self.n = 0; self.kid = kid; self.base = base
    def stamp(self):
        if not self.on: return []
        i = self.n; self.n += 1
        assert self.base + 4 * i + 3 < 84
        r = S(self.base + 4 * i, 2); q = S(self.base + 4 * i + 2, 2)
        return [waitall(vm=False), Ins(f"s_memtime {r}", 'smem', [r], []), Ins(f"s_memrealtime {q}", 'smem', [q], []), waitall(vm=False)]
    def flush(self, pw, vt0, vt1, lane):
        if not self.on: return []
        o = []
        sr = S(96, 4)
        if os.environ.get('DBGST'):
            li = {0: 0, 1: 1, 3: 2}[self.kid]; base = {0: 0, 1: 3, 3: 10}[self.kid]
            o += [sload(S(96, 2), KA['dbg']), waitall(vm=False), salu('s_sub_u32', sr[0], sr[0], 512 * li), salu('s_subb_u32', sr[1], sr[1], 0),
                  salu('s_cmp_eq_u32', None, S(2), int(os.environ.get('DBGWG', '100'))), salu('s_cselect_b32', sr[2], 64, 0), salu('s_mov_b32', sr[3], '0x20000'),
                  valu('v_mov_b32', vt1, 0)]
            for i in range(self.n):
                o.append(valu('v_mov_b32', vt0, S(self.base + 4 * i + 2)))
                o.append(bstore('buffer_store_dword', vt0, vt1, sr, 0, 4 * (base + i)))
            return o
        o += [salu('s_add_u32', sr[0], pw[0], WS_STAMP + self.kid * 0x10000), salu('s_addc_u32', sr[1], pw[1], 0),
              salu('s_mov_b32', sr[2], 0x10000), salu('s_mov_b32', sr[3], '0x20000')]
        o.append(salu('s_lshl_b32', S(100), S(2), 7))
        o.append(valu('v_mov_b32', vt1, 0))
        b = self.base
        for i in range(self.n):
            o.append(salu('s_sub_u32', S(101), S(b + 4 * i), S(b)))
            o.append(valu('v_mov_b32', vt0, S(101)))
            o.append(bstore('buffer_store_dword', vt0, vt1, sr, S(100), 4 * i))
            o.append(valu('v_mov_b32', vt0, S(b + 4 * i + 2)))
            o.append(bstore('buffer_store_dword', vt0, vt1, sr, S(100), 64 + 4 * i))
        o.append(valu('v_mov_b32', vt0, self.n))
        o.append(bstore('buffer_store_dword', vt0, vt1, sr, S(100), 60))
        return o

def spread(sc, stream, lst, g0, g1):
    n = sum(1 for x in lst if x.kind != 'salu')
    k = 0
    for ins in lst:
        g = g0 + (k * (g1 - g0)) // max(n, 1)
        sc.f(stream, g, g + 3, ins)
        if ins.kind != 'salu': k += 1

MAP = os.environ.get('MAP', 'head')
def map_big(P, sSplit, sRB, t0, t1, t2):
    P.add(salu('s_and_b32', t0, S(2), 7))
    P.add(salu('s_lshr_b32', t1, S(2), 3))
    if MAP == 'head':
        P.add(salu('s_and_b32', t2, t1, 1))
        P.add(salu('s_lshl_b32', sSplit, t0, 1))
        P.add(salu('s_add_u32', sSplit, sSplit, t2))
        P.add(salu('s_lshr_b32', sRB, t1, 1))
    elif MAP == 'row':
        P.add(salu('s_and_b32', t2, t1, 1))
        P.add(salu('s_lshl_b32', sRB, t0, 1))
        P.add(salu('s_add_u32', sRB, sRB, t2))
        P.add(salu('s_lshr_b32', sSplit, t1, 1))
    elif MAP == 'hyb':
        P.add(salu('s_lshr_b32', sRB, t0, 1))
        P.add(salu('s_lshl_b32', sRB, sRB, 2))
        P.add(salu('s_and_b32', t2, t1, 3))
        P.add(salu('s_add_u32', sRB, sRB, t2))
        P.add(salu('s_and_b32', sSplit, t0, 1))
        P.add(salu('s_lshl_b32', sSplit, sSplit, 3))
        P.add(salu('s_lshr_b32', t2, t1, 2))
        P.add(salu('s_add_u32', sSplit, sSplit, t2))
def map_small(P, dst, wg, t0):
    if MAP == 'head':
        P.add(salu('s_mov_b32', dst, wg))
    else:
        P.add(salu('s_and_b32', t0, wg, 7))
        P.add(salu('s_lshl_b32', t0, t0, 5))
        P.add(salu('s_lshr_b32', dst, wg, 3))
        P.add(salu('s_add_u32', dst, dst, t0))

def pace(sc, stream, items, g0, g1, slack=2):
    its = [(x if isinstance(x, tuple) else (g0, x)) for x in items]
    tot = sum(i.cost for _, i in its); cum = 0
    for mn, ins in its:
        g = g0 + int(cum * (g1 - g0 + 1) / tot)
        g = min(max(g, mn), g1)
        sc.f(stream, g, min(g + slack, g1), ins)
        cum += ins.cost

def code_srd(dst, start, end, here):
    return [raw(f"s_getpc_b64 {dst[0:2]}\n{here}:", 'salu', [dst[0:2]], []),
            group([raw(f"s_add_u32 {dst[0]}, {dst[0]}, {start}-{here}", 'salu', [dst[0], 'scc'], [dst[0]]),
                   raw(f"s_addc_u32 {dst[1]}, {dst[1]}, ({start}-{here})>>32", 'salu', [dst[1], 'scc'], [dst[1], 'scc'])]),
            raw(f"s_mov_b32 {dst[2]}, {end}-{start}", 'salu', [dst[2]], []),
            salu('s_mov_b32', dst[3], '0x20000')]
```

```python
from asmlib import *
import os
NAME = "adaLN_cond__sliding_block_cached__glu_gated_reglu__prompt"
KA = dict(x=0, k=8, v=16, wq=24, wo=32, bx=40, wg=48, wu=56, wd=64, c=72, wmod=80, out=88, dbg=96, ws=104)
WS_MOD = 0
WS_FLAG = 0x980000
FSTR = int(os.environ.get('FSTR', '4'))
FGRP = max(128, 16 * FSTR)
WS_XN = 0x10000
PLANE = 0x240000
WS_XP = WS_XN + PLANE
WS_X1P = WS_XP + PLANE
WS_H2 = WS_X1P + PLANE
import os
WS_PART = int(os.environ.get('WSPART', '0x1000000'), 0)
WS_PART2 = WS_PART
WS_SIZE = WS_PART + 16 * PLANE
TGB = 18432

def sload(dst, off):
    return Ins(f"s_load_dwordx{dst.n} {dst}, s[0:1], {off}" if dst.n > 1 else f"s_load_dword {dst}, s[0:1], {off}", 'smem', [dst], [S(0, 2)])

def srd(dst, ptr, size, shift=0):
    o = []
    if shift:
        o.append(salu('s_sub_u32', dst[0], ptr[0], shift))
        o.append(salu('s_subb_u32', dst[1], ptr[1], 0))
    else:
        o.append(salu('s_mov_b32', dst[0], ptr[0]))
        o.append(salu('s_mov_b32', dst[1], ptr[1]))
    o.append(salu('s_mov_b32', dst[2], hex(size + shift)))
    o.append(salu('s_mov_b32', dst[3], '0x20000'))
    return o

def kernel_text(name, body, vgpr, accum, sgpr=102):
    return f""".text
.globl {name}
.p2align 8
.type {name},@function
{name}:
{body}
.section .rodata,"a"
.p2align 6
{name}_kdl:
.amdhsa_kernel {name}
  .amdhsa_next_free_vgpr {vgpr}
  .amdhsa_next_free_sgpr {sgpr}
  .amdhsa_accum_offset {accum}
  .amdhsa_group_segment_fixed_size 0
  .amdhsa_kernarg_size 112
  .amdhsa_user_sgpr_count 2
  .amdhsa_user_sgpr_kernarg_segment_ptr 1
  .amdhsa_system_sgpr_workgroup_id_x 1
  .amdhsa_float_denorm_mode_32 3
.end_amdhsa_kernel
"""

def piece_lane_off(P, dst, lane, pitch, t0, t1):
    P.add(valu('v_lshrrev_b32', t0, 2, lane))
    P.add(valu('v_mul_u32_u24', t0, pitch, t0))
    P.add(valu('v_lshrrev_b32', t1, 3, lane))
    P.add(valu('v_and_b32', t1, 2, t1))
    P.add(valu('v_and_b32', dst, 3, lane))
    P.add(valu('v_xor_b32', dst, dst, t1))
    P.add(valu('v_lshl_add_u32', dst, dst, 4, t0))

def tr_addr(P, dst0, dst1, lane, t0, t1):
    P.add(valu('v_lshrrev_b32', t0, 2, lane))
    P.add(valu('v_lshlrev_b32', t0, 6, t0))
    P.add(valu('v_and_b32', t1, 3, lane))
    P.add(valu('v_lshl_add_u32', t0, t1, 3, t0))
    P.add(valu('v_lshlrev_b32', t1, 1, lane))
    P.add(valu('v_and_b32', t1, 32, t1))
    P.add(valu('v_add_u32', dst0, t0, t1))
    P.add(valu('v_xor_b32', dst1, 32, dst0))

WS_STAMP = 0xF00000
class Stamps:
    def __init__(self, on, kid, base=48): self.on = on; self.n = 0; self.kid = kid; self.base = base
    def stamp(self):
        if not self.on: return []
        i = self.n; self.n += 1
        assert self.base + 4 * i + 3 < 84
        r = S(self.base + 4 * i, 2); q = S(self.base + 4 * i + 2, 2)
        return [waitall(vm=False), Ins(f"s_memtime {r}", 'smem', [r], []), Ins(f"s_memrealtime {q}", 'smem', [q], []), waitall(vm=False)]
    def flush(self, pw, vt0, vt1, lane):
        if not self.on: return []
        o = []
        sr = S(96, 4)
        if os.environ.get('DBGST'):
            li = {0: 0, 1: 1, 3: 2}[self.kid]; base = {0: 0, 1: 3, 3: 10}[self.kid]
            o += [sload(S(96, 2), KA['dbg']), waitall(vm=False), salu('s_sub_u32', sr[0], sr[0], 512 * li), salu('s_subb_u32', sr[1], sr[1], 0),
                  salu('s_cmp_eq_u32', None, S(2), int(os.environ.get('DBGWG', '100'))), salu('s_cselect_b32', sr[2], 64, 0), salu('s_mov_b32', sr[3], '0x20000'),
                  valu('v_mov_b32', vt1, 0)]
            for i in range(self.n):
                o.append(valu('v_mov_b32', vt0, S(self.base + 4 * i + 2)))
                o.append(bstore('buffer_store_dword', vt0, vt1, sr, 0, 4 * (base + i)))
            return o
        o += [salu('s_add_u32', sr[0], pw[0], WS_STAMP + self.kid * 0x10000), salu('s_addc_u32', sr[1], pw[1], 0),
              salu('s_mov_b32', sr[2], 0x10000), salu('s_mov_b32', sr[3], '0x20000')]
        o.append(salu('s_lshl_b32', S(100), S(2), 7))
        o.append(valu('v_mov_b32', vt1, 0))
        b = self.base
        for i in range(self.n):
            o.append(salu('s_sub_u32', S(101), S(b + 4 * i), S(b)))
            o.append(valu('v_mov_b32', vt0, S(101)))
            o.append(bstore('buffer_store_dword', vt0, vt1, sr, S(100), 4 * i))
            o.append(valu('v_mov_b32', vt0, S(b + 4 * i + 2)))
            o.append(bstore('buffer_store_dword', vt0, vt1, sr, S(100), 64 + 4 * i))
        o.append(valu('v_mov_b32', vt0, self.n))
        o.append(bstore('buffer_store_dword', vt0, vt1, sr, S(100), 60))
        return o

def spread(sc, stream, lst, g0, g1):
    n = sum(1 for x in lst if x.kind != 'salu')
    k = 0
    for ins in lst:
        g = g0 + (k * (g1 - g0)) // max(n, 1)
        sc.f(stream, g, g + 3, ins)
        if ins.kind != 'salu': k += 1

MAP = os.environ.get('MAP', 'head')
def map_big(P, sSplit, sRB, t0, t1, t2):
    P.add(salu('s_and_b32', t0, S(2), 7))
    P.add(salu('s_lshr_b32', t1, S(2), 3))
    if MAP == 'head':
        P.add(salu('s_and_b32', t2, t1, 1))
        P.add(salu('s_lshl_b32', sSplit, t0, 1))
        P.add(salu('s_add_u32', sSplit, sSplit, t2))
        P.add(salu('s_lshr_b32', sRB, t1, 1))
    elif MAP == 'row':
        P.add(salu('s_and_b32', t2, t1, 1))
        P.add(salu('s_lshl_b32', sRB, t0, 1))
        P.add(salu('s_add_u32', sRB, sRB, t2))
        P.add(salu('s_lshr_b32', sSplit, t1, 1))
    elif MAP == 'bad':
        P.add(salu('s_lshr_b32', sSplit, S(2), 4))
        P.add(salu('s_and_b32', sRB, S(2), 15))
    elif MAP == 'hyb':
        P.add(salu('s_lshr_b32', sRB, t0, 1))
        P.add(salu('s_lshl_b32', sRB, sRB, 2))
        P.add(salu('s_and_b32', t2, t1, 3))
        P.add(salu('s_add_u32', sRB, sRB, t2))
        P.add(salu('s_and_b32', sSplit, t0, 1))
        P.add(salu('s_lshl_b32', sSplit, sSplit, 3))
        P.add(salu('s_lshr_b32', t2, t1, 2))
        P.add(salu('s_add_u32', sSplit, sSplit, t2))
def map_small(P, dst, wg, t0):
    if MAP in ('head', 'bad'):
        P.add(salu('s_mov_b32', dst, wg))
    else:
        P.add(salu('s_and_b32', t0, wg, 7))
        P.add(salu('s_lshl_b32', t0, t0, 5))
        P.add(salu('s_lshr_b32', dst, wg, 3))
        P.add(salu('s_add_u32', dst, dst, t0))

def pace(sc, stream, items, g0, g1, slack=2):
    its = [(x if isinstance(x, tuple) else (g0, x)) for x in items]
    tot = sum(i.cost for _, i in its); cum = 0
    for mn, ins in its:
        g = g0 + int(cum * (g1 - g0 + 1) / tot)
        g = min(max(g, mn), g1)
        sc.f(stream, g, min(g + slack, g1), ins)
        cum += ins.cost

def code_srd(dst, start, end, here):
    return [raw(f"s_getpc_b64 {dst[0:2]}\n{here}:", 'salu', [dst[0:2]], []),
            group([raw(f"s_add_u32 {dst[0]}, {dst[0]}, {start}-{here}", 'salu', [dst[0], 'scc'], [dst[0]]),
                   raw(f"s_addc_u32 {dst[1]}, {dst[1]}, ({start}-{here})>>32", 'salu', [dst[1], 'scc'], [dst[1], 'scc'])]),
            raw(f"s_mov_b32 {dst[2]}, {end}-{start}", 'salu', [dst[2]], []),
            salu('s_mov_b32', dst[3], '0x20000')]
```
